```python
import torch

def _softmax(x, axis=-1):
    return torch.softmax(x, dim=axis)

def _gelu(x):
    return torch.nn.functional.gelu(x, approximate='tanh')

def _silu(x):
    return torch.nn.functional.silu(x)

def _sigmoid(x):
    return torch.sigmoid(x)

def _layernorm(x, axis=-1, eps=1e-05):
    m = x.mean(dim=axis, keepdim=True)
    v = x.var(dim=axis, keepdim=True, unbiased=False)
    return (x - m) / torch.sqrt(v + eps)

def _scatter_add(tgt, idx, src, axis=0):
    return tgt.clone().index_add_(axis, idx, src)

def _segment_sum(src, seg, n):
    out = torch.zeros((n,) + src.shape[1:], dtype=src.dtype)
    return out.index_add_(0, seg, src)

def _pad(x, pw):
    flat = tuple((v for pair in reversed(pw) for v in pair))
    return torch.nn.functional.pad(x, flat)
kernel_name = 'adaLN_cond__spectral_gfnet__dense_activation_silu__prompt'

def setup_inputs():

    _w = lambda a: (lambda t: t.to(torch.bfloat16) if t.is_floating_point() else t)(torch.as_tensor(a))

    def _A_setup():
        B, S, D = (1, 2048, 512)
        Df = D // 2 + 1
        return {'x': _w((lambda *s: torch.randn(*s, dtype=torch.bfloat16) * 0.05)(B, S, D)), 'w_r': _w((lambda *s: torch.randn(*s, dtype=torch.bfloat16) * 1.6)(S, Df) * 0.02), 'w_i': _w((lambda *s: torch.randn(*s, dtype=torch.bfloat16) * 1.6)(S, Df) * 0.02)}
    _A_in = _A_setup()

    def _B_setup():
        B, S, D, F = (1, 2048, 512, 1376)
        return {'x': _w((lambda *s: torch.randn(*s, dtype=torch.bfloat16) * 0.05)(B, S, D)), 'w1': _w((lambda *s: torch.randn(*s, dtype=torch.bfloat16) * 0.8)(D, F) * D ** (-0.5)), 'w2': _w((lambda *s: torch.randn(*s, dtype=torch.bfloat16) * 0.2)(F, D) * F ** (-0.5))}
    _B_in = _B_setup()
    return {'A_x': _A_in['x'], 'A_w_r': _A_in['w_r'], 'A_w_i': _A_in['w_i'], 'B_x': _B_in['x'], 'B_w1': _B_in['w1'], 'B_w2': _B_in['w2'], 'c': _w((lambda *s: torch.randn(*s, dtype=torch.bfloat16) * 0.2)(1, 512) * 8.0), 'w_mod': _w((lambda *s: torch.randn(*s, dtype=torch.bfloat16) * 0.2)(512, 6 * 512) * 512 ** (-0.5) * 8.0)}

def reference(A_x, A_w_r, A_w_i, B_x, B_w1, B_w2, c, w_mod):

    def _A_ref(x, w_r, w_i):
        B, S, D = x.shape
        X = (lambda x, axes=(-2, -1): torch.fft.rfft2(x.float(), dim=axes))(x, axes=(-2, -1))
        W = w_r + 1j * w_i
        X = X * W
        y = (lambda x, s, axes=(-2, -1): torch.fft.irfft2(x, s=s, dim=axes).to(torch.bfloat16))(X, (S, D), axes=(-2, -1))
        return y

    def _B_ref(x, w1, w2):
        h = torch.einsum('bsd,df->bsf', x, w1)
        h = _silu(h)
        out = torch.einsum('bsf,fd->bsd', h, w2)
        return out
    x = A_x
    mod = (_silu(c) @ w_mod).reshape(c.shape[0], 6, 1, -1)
    sa, ca, ga, sb, cb, gb = (mod[:, 0].clone(), mod[:, 1].clone(), mod[:, 2].clone(), mod[:, 3].clone(), mod[:, 4].clone(), mod[:, 5].clone())
    h = _layernorm(x, axis=-1) * (1 + ca) + sa
    x = x + ga * _A_ref(h, A_w_r, A_w_i)
    h = _layernorm(x, axis=-1) * (1 + cb) + sb
    x = x + gb * _B_ref(h, B_w1, B_w2)
    return x
```

```python
import re
REG = re.compile(r'^(-|\|)?(abs\()?([vas])(\d+|\[(\d+):(\d+)\])\)?\|?$')
def regs_of(op):
    op = op.strip()
    if op in ('vcc',): return [('s', 'vcc')]
    if op in ('exec',): return [('s', 'exec')]
    if op == 'm0': return [('s', 'm0')]
    m = REG.match(op)
    if not m: return []
    k = m.group(3)
    if m.group(5) is not None:
        return [(k, i) for i in range(int(m.group(5)), int(m.group(6)) + 1)]
    return [(k, int(m.group(4)))]
TRANS = ('v_exp_f32', 'v_log_f32', 'v_rcp_f32', 'v_rsq_f32', 'v_sqrt_f32', 'v_sin_f32', 'v_cos_f32')
def split_ops(rest):
    ops = []; depth = 0; cur = ''
    for ch in rest:
        if ch == '[': depth += 1
        if ch == ']': depth -= 1
        if ch == ',' and depth == 0:
            ops.append(cur.strip()); cur = ''
        else: cur += ch
    if cur.strip(): ops.append(cur.strip())
    out = []
    for o in ops:
        out.append(o.split(' ')[0])
    return out, ops
class Ins:
    def __init__(s, text):
        s.text = text
        t = text.split(';')[0].strip()
        s.label = t[:-1] if t.endswith(':') else None
        s.mn = None; s.dst = []; s.src = []; s.srcC = []; s.srcAB = []; s.cls = 'other'; s.states = 1; s.target = None
        if s.label or not t or t.startswith('.'):
            s.states = 0; return
        p = t.split(None, 1); mn = p[0]; s.mn = mn
        ops, raw = split_ops(p[1]) if len(p) > 1 else ([], [])
        s.dpp = ('row_' in t or 'quad_perm' in t or 'wave_' in t)
        R = [regs_of(o) for o in ops]
        if mn == 's_nop':
            s.cls = 'nop'; s.states = int(ops[0]) + 1
        elif mn.startswith('v_mfma'):
            s.cls = 'mfma'; s.dst = R[0]; s.srcAB = R[1] + R[2]; s.srcC = R[3]; s.src = s.srcAB + s.srcC
            s.passes = 8 if '32x32x16' in mn else 4
        elif mn.startswith('v_'):
            s.cls = 'valu'
            if mn.startswith('v_permlane') and 'swap' in mn:
                s.dst = R[0] + R[1]; s.src = R[0] + R[1]; s.perm = True
            elif mn.startswith('v_cmp'):
                s.dst = R[0]; s.src = sum(R[1:], [])
            else:
                s.dst = R[0]; s.src = sum(R[1:], [])
                if mn.startswith(('v_fmac', 'v_dot2c', 'v_pk_fmac')) or s.dpp: s.src = s.src + R[0]
                if mn.startswith(('v_add_co', 'v_addc_co', 'v_sub_co')): s.dst = R[0] + R[1]; s.src = sum(R[2:], [])
                if mn.startswith('v_cndmask') and len(ops) == 3: s.src = s.src + [('s', 'vcc')]
            s.trans = mn.replace('_e32', '').replace('_e64', '') in TRANS
            s.lane = mn.startswith(('v_readlane', 'v_readfirstlane'))
        elif mn.startswith('ds_'):
            s.cls = 'ds'
            if mn.startswith(('ds_read', 'ds_bpermute', 'ds_permute', 'ds_swizzle')): s.dst = R[0]; s.src = sum(R[1:], [])
            else: s.src = sum(R, [])
        elif mn.startswith(('global_', 'buffer_', 'flat_')):
            s.cls = 'vmem'
            if mn in ('buffer_wbl2', 'buffer_inv'): pass
            elif 'load_lds' in mn or ' lds' in t:
                s.src = sum(R, []) + [('s', 'm0')]; s.ldsdma = True
            elif 'load' in mn: s.dst = R[0]; s.src = sum(R[1:], [])
            elif 'atomic' in mn and ' sc0' in t: s.dst = R[0]; s.src = sum(R[1:], [])
            else:
                s.src = sum(R, [])
                if 'x3' in mn or 'x4' in mn:
                    s.wide = R[1] if mn.startswith('global_') else R[0]
        elif mn.startswith('s_'):
            s.cls = 'salu'
            if mn.startswith(('s_cbranch', 's_branch')): s.target = ops[0]; s.cls = 'branch'
            elif mn.startswith(('s_cmp', 's_waitcnt', 's_barrier', 's_endpgm', 's_sleep', 's_setprio', 's_bitcmp')): s.src = sum(R, [])
            else:
                s.dst = R[0] if R else []; s.src = sum(R[1:], [])
                if 'saveexec' in mn: s.dst = s.dst + [('s', 'exec')]
def need(i, st):
    n = 0
    def chk(tag, regs, w):
        nonlocal n
        for r in regs:
            a = st.get((tag, r))
            if a is not None and a < w: n = max(n, w - a)
    if i.cls == 'mfma':
        chk('valu', i.src, 2)
        for P, w in ((4, 8), (8, 12)): chk(f'mfma{P}', i.srcAB, w)
        for P, w in ((4, 6), (8, 10)):
            for r in i.srcC:
                a = st.get((f'mfma{P}', r))
                if a is not None and a < w:
                    if st.get(('mfmaD', r)) == (tuple(i.srcC), i.passes): continue
                    n = max(n, w - a)
        for P, w in ((4, 6), (8, 10)):
            for r in i.dst:
                if r in i.srcC: continue
                a = st.get((f'mfma{P}', r))
                if a is not None and a < w: n = max(n, w - a)
        chk('valuexec', [('s', 'exec')], 4)
    elif i.cls == 'valu':
        for P, w in ((4, 8), (8, 12)): chk(f'mfma{P}', i.src + i.dst, w)
        for P, w in ((4, 3), (8, 7)): chk(f'mfmaC{P}', i.dst, w)
        if not getattr(i, 'trans', False): chk('trans', i.src, 1)
        if i.dpp or getattr(i, 'perm', False): chk('valu', [r for r in i.src if r[0] == 'v'], 2)
        if getattr(i, 'lane', False): chk('valu', [r for r in i.src if r[0] == 'v'], 1); chk('valu', [r for r in i.src if r[0] == 's'], 4)
        chk('valu', [r for r in i.src if r[0] == 's'], 2)
        chk('wide', i.dst, 2)
        if i.dpp: chk('valuexec', [('s', 'exec')], 5)
    elif i.cls in ('vmem', 'ds'):
        for P, w in ((4, 8), (8, 12)): chk(f'mfma{P}', i.src + i.dst, w)
        chk('valu', [r for r in i.src if r[0] == 's'], 5)
        chk('wide', i.dst, 1)
        if getattr(i, 'ldsdma', False): chk('salu', [('s', 'm0')], 1)
    elif i.cls in ('salu', 'branch'):
        chk('valu', [r for r in i.src if r[0] == 's'], 1)
    return n
def step(i, st):
    st = {k: (v + i.states if isinstance(v, int) else v) for k, v in st.items()}
    st = {k: v for k, v in st.items() if not isinstance(v, int) or v < 24}
    for r in i.dst:
        for tag in ('valu', 'trans', 'mfma4', 'mfma8', 'mfmaD', 'salu'): st.pop((tag, r), None)
    if i.cls == 'valu':
        for r in i.dst:
            st[('valu', r)] = 0
            if getattr(i, 'trans', False): st[('trans', r)] = 0
        if i.mn.startswith('v_cmpx'): st[('valuexec', ('s', 'exec'))] = 0
    elif i.cls == 'mfma':
        for r in i.dst:
            st[(f'mfma{i.passes}', r)] = 0; st[('mfmaD', r)] = (tuple(i.dst), i.passes)
        for r in i.srcC: st[(f'mfmaC{i.passes}', r)] = 0
    elif i.cls == 'salu':
        for r in i.dst: st[('salu', r)] = 0
    if hasattr(i, 'wide'):
        for r in i.wide: st[('wide', r)] = 0
    return st
def merge(a, b):
    if a is None: return dict(b)
    o = dict(a)
    for k, v in b.items():
        if k not in o: o[k] = v
        elif isinstance(v, int): o[k] = min(o[k], v)
        elif o[k] != v: o[k] = None
    for k in list(o):
        if k[0] == 'mfmaD' and (k not in a or k not in b): o[k] = None
    return o
def hazard_pass(lines):
    ins = [Ins(l) for l in lines]
    for it in range(6):
        entry = {}
        for sweep in range(2):
            st = {}; out = []; changed = False; dead = False
            for i in ins:
                if i.label:
                    st = merge(entry.get(i.label), st) if not dead else dict(entry.get(i.label) or {})
                    dead = False
                    out.append(i); continue
                if i.mn is None: out.append(i); continue
                n = need(i, st) if sweep == 1 else 0
                if n > 0:
                    while n > 0:
                        k = min(n, 16); nop = Ins(f'    s_nop {k - 1}'); out.append(nop); st = step(nop, st); n -= k
                    changed = True
                out.append(i); st = step(i, st)
                if i.cls == 'branch':
                    entry[i.target] = merge(entry.get(i.target), st)
                    if i.mn == 's_branch': dead = True
                if i.mn == 's_endpgm': dead = True
        ins = out
        if not changed: break
    return [i.text for i in ins]

class Kern:
    def __init__(s, name, grid, block=256, lds=0, vgpr=None, agpr=0, sgpr=96):
        s.name = name; s.grid = grid; s.block = block; s.lds = lds; s.L = []; s.vgpr = vgpr; s.agpr = agpr; s.sgpr = sgpr; s.nl = 0
    def __call__(s, t):
        for l in t.split('\n'):
            l = l.strip()
            if l: s.L.append(l if l.endswith(':') else '    ' + l)
    def lab(s, base='L'):
        s.nl += 1; return f'{s.name}_{base}{s.nl}'
    def text(s):
        L = hazard_pass(s.L)
        mv = ma = -1
        for l in L:
            t = l.split(';')[0]
            for m in re.finditer(r'\b([va])(?:(\d+)\b|\[(\d+):(\d+)\])', t):
                hi = int(m.group(2) if m.group(2) is not None else m.group(4))
                if m.group(1) == 'v': mv = max(mv, hi)
                else: ma = max(ma, hi)
        s.nv = mv + 1; s.na = ma + 1
        assert s.nv <= 256 and s.na <= 256, (s.name, s.nv, s.na)
        s.ninst = sum(1 for l in L if not l.endswith(':'))
        return f'.globl {s.name}\n.p2align 8\n.type {s.name},@function\n{s.name}:\n' + '\n'.join(L) + '\n'
    def desc(s):
        acc = max(4, (s.nv + 3) // 4 * 4)
        nf = acc + s.na if s.na else s.nv
        return f'''.p2align 6
.amdhsa_kernel {s.name}
  .amdhsa_next_free_vgpr {nf}
  .amdhsa_next_free_sgpr {s.sgpr}
  .amdhsa_accum_offset {acc}
  .amdhsa_group_segment_fixed_size 0
  .amdhsa_kernarg_size 88
  .amdhsa_user_sgpr_count 2
  .amdhsa_user_sgpr_kernarg_segment_ptr 1
  .amdhsa_system_sgpr_workgroup_id_x 1
  .amdhsa_float_denorm_mode_32 3
.end_amdhsa_kernel
'''
def assemble_file(header, kerns, tables, launches=None):
    s = header
    for k in (launches or kerns):
        s += f'; @launch kernel={k.name} grid=({k.grid},1,1) block=({k.block},1,1) lds={k.lds}\n'
    s += '.amdgcn_target "amdgcn-amd-amdhsa--gfx950"\n.text\n'
    for k in kerns: s += k.text()
    s += tables
    s += '.section .rodata,"a"\n'
    for k in kerns: s += k.desc()
    return s
def vr(a, n=1): return f'v{a}' if n == 1 else f'v[{a}:{a + n - 1}]'
def ar(a, n=1): return f'a{a}' if n == 1 else f'a[{a}:{a + n - 1}]'
def sr(a, n=1): return f's{a}' if n == 1 else f's[{a}:{a + n - 1}]'
```

```python
import numpy as np
def rbf_bits(x):
    x = np.asarray(x, np.float32)
    u = x.view(np.uint32).astype(np.uint64)
    r = ((u + 0x7FFF + ((u >> 16) & 1)) >> 16)
    return r.astype(np.uint32)
def pack8(vals):
    b = rbf_bits(vals)
    return (b[..., 0::2] | (b[..., 1::2] << 16)).astype(np.uint32)
def f32bits(x): return np.asarray(x, np.float32).view(np.uint32)
TP = 2 * np.pi
lane = np.arange(64); n16 = lane & 15; g4 = lane >> 4
e8 = np.arange(8); r4 = np.arange(4)
def clean(x):
    x = np.array(x, np.float64); x[np.abs(x) < 1e-12] = 0.0; return x

def table_A():
    T1 = np.zeros((4, 8, 64, 4), np.uint32)
    for w in range(4):
        k2 = 16 * w + n16
        for t in range(2):
            d2 = 32 * t + 8 * g4[:, None] + e8[None, :]
            th = TP * ((d2 * k2[:, None]) % 64) / 64
            T1[w, 0 + t] = pack8(clean(np.cos(th))); T1[w, 2 + t] = pack8(clean(np.sin(th))); T1[w, 4 + t] = pack8(clean(-np.sin(th)))
        d1 = 4 * (g4[:, None] & 1) + r4[None, :]
        th = TP * (d1 * k2[:, None]) / 512
        T1[w, 6] = f32bits(np.cos(th)); T1[w, 7] = f32bits(np.sin(th))
    T2 = np.zeros((8, 64, 4), np.uint32)
    for beta in range(4):
        gam, h = beta >> 1, beta & 1
        m = n16; g = m >> 2; r = m & 3
        k1 = 4 * gam + g; v = 2 * h + (r >> 1); cp = r & 1
        for b in range(2):
            s1 = 2 * b + (g4 >> 1)
            d1 = 4 * (g4[:, None] & 1) + (e8[None, :] >> 1); c = e8[None, :] & 1
            sg = 1 if gam == 0 else -1
            th = TP * (((sg * d1 * k1[:, None] + 2 * (s1 * v)[:, None]) % 8) / 8)
            co, si = np.cos(th), np.sin(th)
            cp2 = cp[:, None]
            if gam == 0:
                val = np.where(cp2 == 0, np.where(c == 0, co, si), np.where(c == 0, -si, co))
            else:
                val = np.where(cp2 == 0, np.where(c == 0, co, -si), np.where(c == 0, -si, -co))
            T2[beta * 2 + b] = pack8(clean(val))
    return T1, T2

def cplx_frag(th, sign):
    co, si = np.cos(th), sign * np.sin(th)
    re = np.zeros((64, 8)); im = np.zeros((64, 8))
    re[:, 0::2] = co; re[:, 1::2] = -si
    im[:, 0::2] = si; im[:, 1::2] = co
    return pack8(clean(re)), pack8(clean(im))

def table_B():
    T = np.zeros((4, 12, 64, 4), np.uint32)
    q = 4 * g4[:, None] + r4[None, :]
    L = n16[:, None]
    for v in range(4):
        T[v, 0], T[v, 1] = cplx_frag(TP * ((q * (v + 4 * L)) % 64) / 64, -1)
        T[v, 2], T[v, 3] = cplx_frag(TP * ((q * L) % 16) / 16, -1)
        T[v, 4], T[v, 5] = cplx_frag(TP * ((L * (v + 4 * q)) % 64) / 64, +1)
        th = TP * (q * (v + 4 * L)) / 1024
        T[v, 6] = f32bits(np.cos(th)); T[v, 7] = f32bits(np.sin(th))
        th = TP * (L * (v + 4 * q)) / 1024
        sc = 2.0 ** -20
        T[v, 8] = f32bits(np.cos(th) * sc); T[v, 9] = f32bits(np.sin(th) * sc)
        up = v + 4 * L + 64 * q
        T[v, 10] = f32bits(np.sin(TP * up / 2048)); T[v, 11] = f32bits(np.cos(TP * up / 2048))
    return T

def table_C():
    T1 = np.zeros((8, 64, 4), np.uint32)
    j = n16 >> 3; d1 = n16 & 7
    for b in range(2):
        s1 = 2 * b + j
        for t in range(2):
            k1 = 4 * t + g4
            v = e8[None, :] >> 1; c = e8[None, :] & 1
            sg = 1 if t == 0 else -1
            th = TP * (((sg * (d1 * k1)[:, None] + 2 * s1[:, None] * v) % 8) / 8)
            co, si = np.cos(th), np.sin(th)
            if t == 0:
                re = np.where(c == 0, co, -si); im = np.where(c == 0, si, co)
            else:
                re = np.where(c == 0, co, -si); im = np.where(c == 0, -si, -co)
            T1[(b * 2 + 0) * 2 + t] = pack8(clean(re)); T1[(b * 2 + 1) * 2 + t] = pack8(clean(im))
    T2 = np.zeros((4, 10, 64, 4), np.uint32)
    for w in range(4):
        k2 = 16 * w + 4 * g4[:, None] + r4[None, :]
        th = TP * (d1[:, None] * k2) / 512
        T2[w, 0] = f32bits(np.cos(th)); T2[w, 1] = f32bits(np.sin(th))
        d2 = 16 * w + n16
        for t in range(4):
            k2 = 16 * t + 4 * g4[:, None] + r4[None, :]
            T2[w, 2 + t], T2[w, 6 + t] = cplx_frag(TP * ((d2[:, None] * k2) % 64) / 64, +1)
    return T1, T2

def emit_table(name, arr):
    a = np.asarray(arr, np.uint32).reshape(-1, 8)
    s = f'.p2align 8\n.type {name},@object\n{name}:\n'
    for row in a:
        s += '.long ' + ','.join('0x%x' % x for x in row) + '\n'
    s += f'.size {name}, {a.size * 4}\n'
    return s
```

```python
import sys, numpy as np
from asmgen import *
import tables as T

STAMP = '--stamp' in sys.argv
WS_MOD = 0x0; WS_WT = 0x100000; WS_W1F = 0x400000; WS_W2F = 0x600000; WS_P = 0x800000; WS_Q = 0xA00000
WS_X1 = 0xC00000; WS_H2 = 0xE00000; WS_ACT = 0x1000000
KA_X, KA_WR, KA_WI, KA_W1, KA_W2, KA_C, KA_WM, KA_OUT, KA_DBG, KA_WS = 0, 8, 16, 32, 40, 48, 56, 64, 72, 80
LOG2E = 0x3fb8aa3b; NLOG2E = 0xbfb8aa3b
EPS = 0x3727c5ac
INV512 = 0x3b000000

def stamp(k, i):
    if STAMP:
        k(f's_memrealtime s[{70 + 2 * i}:{71 + 2 * i}]\ns_waitcnt lgkmcnt(0)')
def stamp_out(k, n, sel=(0,), wg='s2'):
    if not STAMP: return
    stamp(k, n - 1)
    k('s_load_dwordx2 s[66:67], s[0:1], 72\ns_waitcnt lgkmcnt(0) vmcnt(0)')
    k('s_mov_b64 exec, -1\nv_cmp_eq_u32 vcc, 0, v0\ns_and_saveexec_b64 s[68:69], vcc')
    e = k.lab('st')
    k(f's_cbranch_execz {e}')
    for j, w in enumerate(sel):
        nx = k.lab('st')
        k(f's_cmp_eq_u32 {wg}, {w}\ns_cbranch_scc0 {nx}')
        k('v_mov_b32 v1, 0')
        for i in range(n):
            k(f'v_mov_b32 v2, s{70 + 2 * i}\nglobal_store_dword v1, v2, s[66:67] offset:{(j * 8 + i) * 4}')
        k(f'{nx}:')
    k(f'{e}:')
def addc(k, d, s, c):
    k(f's_add_u32 s{d}, s{s}, {c}\ns_addc_u32 s{d + 1}, s{s + 1}, 0')
def pcaddr(k, d, sym):
    l = k.lab('pc')
    k(f's_getpc_b64 s[{d}:{d + 1}]\n{l}:\ns_add_u32 s{d}, s{d}, {sym}-{l}\ns_addc_u32 s{d + 1}, s{d + 1}, 0')
def unpack(k, dlo, dhi, src):
    k(f'v_lshlrev_b32 v{dlo}, 16, v{src}\nv_and_b32 v{dhi}, 0xffff0000, v{src}')

def gen_prep():
    NM, NWT, NSP, NW1, NW2 = 96, 256, 8, 192, 172
    k = Kern('prep_kernel', NM + NWT + NSP + NW1 + NW2, lds=2048)
    stamp(k, 0)
    k(f's_load_dwordx2 s[8:9], s[0:1], {KA_WS}')
    k(f's_cmp_lt_u32 s2, {NM}\ns_cbranch_scc1 prep_mod')
    k(f's_cmp_lt_u32 s2, {NM + NWT}\ns_cbranch_scc1 prep_wt')
    k(f's_cmp_lt_u32 s2, {NM + NWT + NSP}\ns_cbranch_scc1 prep_sp')
    k(f's_cmp_lt_u32 s2, {NM + NWT + NSP + NW1}\ns_cbranch_scc1 prep_w1')
    k(f's_cmp_lt_u32 s2, {NM + NWT + NSP + NW1 + NW2}\ns_cbranch_scc1 prep_w2')
    k('s_endpgm')
    k('prep_mod:')
    k(f's_load_dwordx4 s[4:7], s[0:1], {KA_C}')
    k('v_and_b32 v1, 3, v0\nv_lshrrev_b32 v2, 2, v0')
    k('v_lshlrev_b32 v3, 1, v2')
    k('v_mul_u32_u24 v4, 6144, v2\ns_lshl_b32 s10, s2, 6\nv_lshl_add_u32 v4, v1, 4, v4\nv_add_u32 v4, s10, v4')
    for i in range(1, 8): k(f'v_add_u32 v{4 + i}, {393216 * i}, v4')
    k('s_waitcnt lgkmcnt(0)')
    for i in range(8): k(f'global_load_ushort v{12 + i}, v3, s[4:5] offset:{128 * i}')
    for i in range(8): k(f'global_load_dwordx4 v[{20 + 4 * i}:{23 + 4 * i}], v{4 + i}, s[6:7]')
    k('v_lshrrev_b32 v2, 4, v0\nv_lshlrev_b32 v2, 7, v2\nv_lshl_add_u32 v2, v1, 5, v2')
    k('s_lshr_b32 s11, s2, 4\ns_mov_b32 s12, 0\ns_cmp_eq_u32 s11, 1\ns_cselect_b32 s12, 1.0, s12\ns_cmp_eq_u32 s11, 4\ns_cselect_b32 s12, 1.0, s12')
    k('s_waitcnt vmcnt(8)')
    for i in range(8): k(f'v_lshlrev_b32 v{12 + i}, 16, v{12 + i}')
    for i in range(8): k(f'v_mul_f32 v{4 + i}, {NLOG2E:#x}, v{12 + i}')
    for i in range(8): k(f'v_exp_f32 v{4 + i}, v{4 + i}')
    for i in range(8): k(f'v_add_f32 v{4 + i}, 1.0, v{4 + i}')
    for i in range(8): k(f'v_rcp_f32 v{4 + i}, v{4 + i}')
    for i in range(8): k(f'v_mul_f32 v{12 + i}, v{12 + i}, v{4 + i}')
    for i in range(8): k(f'v_cvt_pk_bf16_f32 v{12 + i}, v{12 + i}, v{12 + i}')
    for i in range(8): k(f'v_and_b32 v{12 + i}, 0xffff0000, v{12 + i}')
    ACC = 52
    for i in range(8):
        k(f's_waitcnt vmcnt({7 - i})')
        for j in range(4):
            unpack(k, 4 + 2 * j, 5 + 2 * j, 20 + 4 * i + j)
        for e in range(8):
            if i == 0: k(f'v_mul_f32 v{ACC + e}, v{12 + i}, v{4 + e}')
            else: k(f'v_fmac_f32 v{ACC + e}, v{12 + i}, v{4 + e}')
    for sh in (4, 8):
        for e in range(8): k(f'v_add_f32_dpp v{ACC + e}, v{ACC + e}, v{ACC + e} row_ror:{sh} row_mask:0xf bank_mask:0xf')
    k(f'ds_write_b128 v2, v[{ACC}:{ACC + 3}]\nds_write_b128 v2, v[{ACC + 4}:{ACC + 7}] offset:16')
    k('s_waitcnt lgkmcnt(0)\ns_barrier')
    k('v_cmp_gt_u32 vcc, 32, v0\ns_and_saveexec_b64 s[14:15], vcc\ns_cbranch_execz prep_end')
    k('v_lshlrev_b32 v1, 2, v0')
    for i in range(16): k(f'ds_read_b32 v{4 + i}, v1 offset:{128 * i}')
    k('s_lshl_b32 s10, s2, 7\nv_add_u32 v2, s10, v1')
    k('s_waitcnt lgkmcnt(0)')
    for st in (8, 4, 2, 1):
        for i in range(st): k(f'v_add_f32 v{4 + i}, v{4 + i}, v{4 + i + st}')
    k('v_cvt_pk_bf16_f32 v4, v4, v4\nv_and_b32 v4, 0xffff0000, v4\nv_add_f32 v4, s12, v4\nv_cvt_pk_bf16_f32 v4, v4, v4\nv_and_b32 v4, 0xffff0000, v4')
    k('global_store_dword v2, v4, s[8:9]')
    k('s_branch prep_end')
    k('prep_wt:')
    k(f's_load_dwordx4 s[4:7], s[0:1], {KA_WR}')
    k(f's_sub_u32 s10, s2, {NM}')
    k('s_and_b32 s11, s10, 3\ns_lshr_b32 s12, s10, 2')
    k('v_lshrrev_b32 v1, 6, v0\nv_and_b32 v2, 63, v0')
    k('v_readfirstlane_b32 s13, v1')
    k('s_and_b32 s14, s12, 3\ns_lshl_b32 s14, s14, 2\ns_add_u32 s14, s14, s13')
    k('s_lshr_b32 s15, s12, 2\ns_and_b32 s15, s15, 3')
    k('s_lshr_b32 s16, s12, 4')
    k('s_lshl_b32 s17, s14, 2\ns_add_u32 s17, s17, s15\ns_lshl_b32 s18, s16, 8\ns_add_u32 s17, s17, s18')
    k('s_mul_i32 s17, s17, 514')
    k('s_lshl_b32 s18, s11, 6\nv_add_u32 v2, s18, v2')
    k('v_lshl_add_u32 v3, v2, 1, s17')
    for i in range(1, 8):
        r, hf = i >> 1, i & 1
        k(f'v_add_u32 v{3 + i}, {(64 * r + 1024 * hf) * 514}, v3')
    k('s_lshl_b32 s18, s15, 11\ns_lshl_b32 s19, s16, 4\ns_add_u32 s19, s19, s14\ns_lshl_b32 s19, s19, 5\ns_add_u32 s18, s18, s19')
    k(f's_add_u32 s18, s18, {WS_WT}')
    k('v_lshl_add_u32 v11, v2, 13, s18')
    k('s_waitcnt lgkmcnt(0)')
    for i in range(8):
        k(f'global_load_ushort v{12 + i}, v{3 + i}, s[4:5]\nglobal_load_ushort v{20 + i}, v{3 + i}, s[6:7]')
    k('v_cmp_ne_u32 vcc, 0, v2')
    k('s_waitcnt vmcnt(0)')
    for i in range(8): k(f'v_lshl_or_b32 v{12 + i}, v{20 + i}, 16, v{12 + i}')
    k('s_and_saveexec_b64 s[14:15], vcc')
    k('global_store_dwordx4 v11, v[12:15], s[8:9]\nglobal_store_dwordx4 v11, v[16:19], s[8:9] offset:16')
    k('s_branch prep_end')
    k('prep_sp:')
    k(f's_load_dwordx4 s[4:7], s[0:1], {KA_WR}')
    k(f's_sub_u32 s10, s2, {NM + NWT}')
    k('s_lshr_b32 s11, s10, 2\ns_lshl_b32 s11, s11, 8')
    k('s_and_b32 s12, s10, 3\ns_lshl_b32 s12, s12, 8\nv_add_u32 v1, s12, v0')
    k('v_add_u32 v2, 1024, v1\nv_sub_u32 v3, 2048, v1\nv_and_b32 v3, 2047, v3\nv_sub_u32 v4, 1024, v1\nv_and_b32 v4, 2047, v4')
    k('s_lshl_b32 s13, s11, 1\ns_movk_i32 s14, 514')
    k('v_mov_b32 v9, s13')
    for i in range(4): k(f'v_mad_u32_u24 v{5 + i}, v{1 + i}, s14, v9')
    k('v_and_b32 v10, 3, v1\nv_lshlrev_b32 v10, 11, v10')
    k('v_bfe_u32 v11, v1, 2, 4\nv_lshl_add_u32 v10, v11, 5, v10')
    k('v_bfe_u32 v11, v1, 6, 2\nv_lshl_add_u32 v10, v11, 3, v10')
    k('v_lshrrev_b32 v11, 8, v1\nv_lshl_add_u32 v10, v11, 9, v10')
    k(f's_lshl_b32 s13, s11, 13\ns_add_u32 s13, s13, {WS_WT}\nv_add_u32 v10, s13, v10')
    k('s_waitcnt lgkmcnt(0)')
    for i in range(4):
        k(f'global_load_ushort v{12 + i}, v{5 + i}, s[4:5]\nglobal_load_ushort v{16 + i}, v{5 + i}, s[6:7]')
    k('s_waitcnt vmcnt(0)')
    for i in range(8): k(f'v_lshlrev_b32 v{12 + i}, 16, v{12 + i}')
    k('v_add_f32 v12, v12, v14\nv_add_f32 v13, v13, v15\nv_sub_f32 v16, v16, v18\nv_sub_f32 v17, v17, v19')
    k('v_mul_f32 v12, 0.5, v12\nv_mul_f32 v13, 0.5, v13\nv_mul_f32 v16, 0.5, v16\nv_mul_f32 v17, 0.5, v17')
    k('v_cvt_pk_bf16_f32 v20, v12, v16\nv_cvt_pk_bf16_f32 v21, v13, v17')
    k('global_store_dwordx2 v10, v[20:21], s[8:9]')
    k('s_branch prep_end')
    def packstore(k):
        k('s_mov_b32 s20, 0x05040100\ns_mov_b32 s21, 0x07060302')
        k('s_waitcnt vmcnt(0)')
        for j in range(4):
            k(f'v_perm_b32 v{20 + j}, v{13 + 2 * j}, v{12 + 2 * j}, s20\nv_perm_b32 v{24 + j}, v{13 + 2 * j}, v{12 + 2 * j}, s21')
        k('global_store_dwordx4 v11, v[20:23], s[8:9]\nglobal_store_dwordx4 v11, v[24:27], s[8:9] offset:16')
    k('prep_w1:')
    k(f's_load_dwordx2 s[4:5], s[0:1], {KA_W1}')
    k(f's_sub_u32 s10, s2, {NM + NWT + NSP}')
    k('s_mul_i32 s11, s10, 0x5556\ns_lshr_b32 s11, s11, 16')
    k('s_mul_i32 s12, s11, 3\ns_sub_u32 s12, s10, s12\ns_lshl_b32 s12, s12, 8\nv_add_u32 v1, s12, v0')
    k('v_cmp_gt_u32 vcc, 688, v1\ns_and_saveexec_b64 s[14:15], vcc\ns_cbranch_execz prep_end')
    k(f's_mul_i32 s13, s11, {8 * 2752}\nv_lshl_add_u32 v2, v1, 2, s13')
    for i in range(1, 4): k(f'v_add_u32 v{2 + i}, {2 * 2752 * i}, v2')
    k(f'v_lshrrev_b32 v11, 4, v1\nv_lshlrev_b32 v11, 15, v11\nv_and_b32 v10, 15, v1\nv_lshl_add_u32 v11, v10, 5, v11')
    k(f's_lshl_b32 s13, s11, 9\ns_add_u32 s13, s13, {WS_W1F}\nv_add_u32 v11, s13, v11')
    k('s_waitcnt lgkmcnt(0)')
    for e in range(8): k(f'global_load_dword v{12 + e}, v{2 + (e >> 1)}, s[4:5] offset:{2752 * (e & 1)}')
    packstore(k)
    k('s_branch prep_end')
    k('prep_w2:')
    k(f's_load_dwordx2 s[4:5], s[0:1], {KA_W2}')
    k(f's_sub_u32 s10, s2, {NM + NWT + NSP + NW1}')
    k('s_lshr_b32 s11, s10, 1\ns_and_b32 s12, s10, 1')
    k('s_lshl_b32 s13, s11, 14\ns_lshl_b32 s14, s12, 12\ns_add_u32 s13, s13, s14')
    k('v_lshl_add_u32 v2, v0, 2, s13\nv_add_u32 v3, 8192, v2')
    k(f'v_lshrrev_b32 v11, 4, v0\nv_mul_u32_u24 v11, {86 * 1024}, v11\nv_and_b32 v10, 15, v0\nv_lshl_add_u32 v11, v10, 5, v11')
    k(f's_lshl_b32 s13, s10, 9\ns_add_u32 s13, s13, {WS_W2F}\nv_add_u32 v11, s13, v11')
    k('s_waitcnt lgkmcnt(0)')
    for e in range(8): k(f'global_load_dword v{12 + e}, v{2 + (e >> 2)}, s[4:5] offset:{1024 * (e & 3)}')
    packstore(k)
    k('prep_end:')
    stamp_out(k, 2, sel=(0, 95, 96, 351, 723))
    k('s_endpgm')
    return k

def xcd_map(k, d, src='s2'):
    k(f's_and_b32 s{d}, {src}, 7\ns_lshl_b32 s{d}, s{d}, 5\ns_lshr_b32 s3, {src}, 3\ns_add_u32 s{d}, s{d}, s3')

def tload(k, dst, voff, base, chunk):
    k(f'global_load_dwordx4 v[{dst}:{dst + 3}], v{voff}, s[{base}:{base + 1}] offset:{chunk * 1024}')

def cmul(k, ore, oim, re, im, c, s, sign):
    if sign < 0:
        k(f'v_mul_f32 v{ore}, v{re}, v{c}\nv_mul_f32 v{oim}, v{im}, v{c}\nv_fmac_f32 v{ore}, v{im}, v{s}\nv_fma_f32 v{oim}, -v{re}, v{s}, v{oim}')
    else:
        k(f'v_mul_f32 v{ore}, v{re}, v{c}\nv_mul_f32 v{oim}, v{im}, v{c}\nv_fma_f32 v{ore}, -v{im}, v{s}, v{ore}\nv_fmac_f32 v{oim}, v{re}, v{s}')
M16 = 'v_mfma_f32_16x16x32_bf16'
M32 = 'v_mfma_f32_32x32x16_bf16'
def m16(k, d, a, b, c=None):
    k(f'{M16} v[{d}:{d + 3}], v[{a}:{a + 3}], v[{b}:{b + 3}], ' + ('0' if c is None else f'v[{c}:{c + 3}]'))

def gen_A():
    RS = 1056
    k = Kern('fa_kernel', 256, lds=8 * RS)
    stamp(k, 0)
    k('s_cmp_ge_u32 s2, 256\ns_cbranch_scc1 fa_end')
    k(f's_load_dwordx2 s[4:5], s[0:1], {KA_X}\ns_load_dwordx2 s[8:9], s[0:1], {KA_WS}')
    pcaddr(k, 10, 'tabA1'); pcaddr(k, 12, 'tabA2')
    k('v_and_b32 v1, 63, v0\nv_lshrrev_b32 v2, 6, v0\nv_lshlrev_b32 v3, 4, v1')
    k('v_lshl_add_u32 v4, v2, 13, v3\nv_add_u32 v5, 4096, v4\nv_add_u32 v6, 4096, v3')
    TC = 32
    for i in range(8): tload(k, TC + 4 * i, 4 + (i >> 2), 10, i & 3)
    TA2 = 64
    for i in range(8): tload(k, TA2 + 4 * i, 3 if i < 4 else 6, 12, i & 3)
    xcd_map(k, 14)
    k('s_lshl_b32 s15, s14, 11\nv_lshl_add_u32 v7, v2, 19, v3\nv_add_u32 v7, s15, v7')
    k('v_lshlrev_b32 v8, 5, v1')
    k('s_waitcnt lgkmcnt(0)')
    stamp(k, 1)
    k('global_load_dwordx4 v[12:15], v7, s[4:5]\nglobal_load_dwordx4 v[16:19], v7, s[4:5] offset:1024')
    SA, CA = 96, 104
    k(f'global_load_dwordx4 v[{SA}:{SA + 3}], v8, s[8:9]\nglobal_load_dwordx4 v[{SA + 4}:{SA + 7}], v8, s[8:9] offset:16')
    k(f'global_load_dwordx4 v[{CA}:{CA + 3}], v8, s[8:9] offset:2048\nglobal_load_dwordx4 v[{CA + 4}:{CA + 7}], v8, s[8:9] offset:2064')
    k(f'v_mul_u32_u24 v9, {2 * RS}, v2\nv_add_u32 v9, v9, v3')
    k(f'v_bfe_u32 v10, v1, 1, 1\nv_mul_u32_u24 v10, {2 * RS}, v10\nv_and_b32 v11, 1, v1\nv_lshl_add_u32 v10, v11, 3, v10')
    k('v_bfe_u32 v11, v1, 2, 2\nv_lshl_add_u32 v10, v11, 4, v10\nv_lshrrev_b32 v11, 4, v1\nv_lshl_add_u32 v10, v11, 7, v10')
    addc(k, 16, 8, WS_P)
    k('s_lshl_b32 s15, s14, 13\ns_add_u32 s16, s16, s15\ns_addc_u32 s17, s17, 0')
    k('v_and_b32 v4, 15, v1\nv_lshl_add_u32 v4, v2, 4, v4\nv_lshrrev_b32 v5, 4, v1\nv_lshl_add_u32 v4, v5, 6, v4')
    k('v_sub_u32 v5, 256, v4\nv_and_b32 v5, 255, v5\nv_lshlrev_b32 v4, 5, v4\nv_lshlrev_b32 v5, 5, v5')
    X = 112
    k('s_waitcnt vmcnt(4)')
    stamp(k, 2)
    for p in range(2):
        for j in range(4): unpack(k, X + 8 * p + 2 * j, X + 8 * p + 2 * j + 1, 12 + 4 * p + j)
    S = 20
    for p in range(2):
        k(f'v_add_f32 v{S + 2 * p}, v{X + 8 * p}, v{X + 8 * p + 1}\nv_mul_f32 v{S + 2 * p + 1}, v{X + 8 * p}, v{X + 8 * p}')
    for p in range(2): k(f'v_fmac_f32 v{S + 2 * p + 1}, v{X + 8 * p + 1}, v{X + 8 * p + 1}')
    for e in range(2, 8):
        for p in range(2):
            k(f'v_add_f32 v{S + 2 * p}, v{S + 2 * p}, v{X + 8 * p + e}\nv_fmac_f32 v{S + 2 * p + 1}, v{X + 8 * p + e}, v{X + 8 * p + e}')
    for m in ('row_ror:8 row_mask:0xf', 'row_ror:4 row_mask:0xf', 'row_ror:2 row_mask:0xf', 'row_ror:1 row_mask:0xf', 'row_bcast:15 row_mask:0xa', 'row_bcast:31 row_mask:0xc'):
        for q in range(4): k(f'v_add_f32_dpp v{S + q}, v{S + q}, v{S + q} {m} bank_mask:0xf')
    for q in range(4): k(f'v_readlane_b32 s{20 + q}, v{S + q}, 63')
    k(f's_mov_b32 s24, {INV512:#x}')
    for p in range(2): k(f'v_mov_b32 v{24 + p}, s24\nv_mov_b32 v{26 + p}, s24')
    for p in range(2): k(f'v_mul_f32 v{24 + p}, s{20 + 2 * p}, v{24 + p}\nv_mul_f32 v{26 + p}, s{21 + 2 * p}, v{26 + p}')
    for p in range(2): k(f'v_fma_f32 v{26 + p}, -v{24 + p}, v{24 + p}, v{26 + p}')
    for p in range(2): k(f'v_max_f32 v{26 + p}, 0, v{26 + p}')
    for p in range(2): k(f'v_add_f32 v{26 + p}, {EPS:#x}, v{26 + p}')
    for p in range(2): k(f'v_rsq_f32 v{26 + p}, v{26 + p}')
    for p in range(2):
        for e in range(8): k(f'v_sub_f32 v{X + 8 * p + e}, v{X + 8 * p + e}, v{24 + p}')
    for p in range(2):
        for e in range(8): k(f'v_mul_f32 v{X + 8 * p + e}, v{X + 8 * p + e}, v{26 + p}')
    k('s_waitcnt vmcnt(0)')
    for p in range(2):
        for e in range(8): k(f'v_fma_f32 v{X + 8 * p + e}, v{X + 8 * p + e}, v{CA + e}, v{SA + e}')
        for j in range(4): k(f'v_cvt_pk_bf16_f32 v{12 + 4 * p + j}, v{X + 8 * p + 2 * j}, v{X + 8 * p + 2 * j + 1}')
        k(f'ds_write_b128 v9, v[{12 + 4 * p}:{15 + 4 * p}] offset:{RS * p}')
    k('s_waitcnt lgkmcnt(0)\ns_barrier')
    stamp(k, 3)
    AF = 96
    for t in range(4):
        for b in range(2):
            for hf in range(2):
                f = AF + 4 * (2 * t + b) + 2 * hf
                k(f'ds_read_b64_tr_b16 v[{f}:{f + 1}], v10 offset:{(4 * b + (t >> 1)) * RS + 512 * (t & 1) + 64 * hf}')
    ACC = 12
    bre = [TC, TC + 4, TC + 8, TC + 12]; bim = [TC + 16, TC + 20, TC, TC + 4]
    for t in range(4):
        k(f's_waitcnt lgkmcnt({12 - 4 * t})')
        for b in range(2):
            f = AF + 4 * (2 * t + b)
            m16(k, ACC + 8 * b, f, bre[t], None if t == 0 else ACC + 8 * b)
            m16(k, ACC + 8 * b + 4, f, bim[t], None if t == 0 else ACC + 8 * b + 4)
    TW = 96; Y = 112
    for b in range(2):
        for r in range(4): cmul(k, TW + 8 * b + 2 * r, TW + 8 * b + 2 * r + 1, ACC + 8 * b + r, ACC + 8 * b + 4 + r, 56 + r, 60 + r, -1)
        for r in range(4): k(f'v_cvt_pk_bf16_f32 v{Y + 4 * b + r}, v{TW + 8 * b + 2 * r}, v{TW + 8 * b + 2 * r + 1}')
    O = 12
    for b in range(2):
        for be in range(4): m16(k, O + 4 * be, TA2 + 4 * (2 * be + b), Y + 4 * b, None if b == 0 else O + 4 * be)
    for gm in range(2):
        for v in range(4): k(f'v_cvt_pk_bf16_f32 v{96 + 4 * gm + v}, v{O + 8 * gm + 2 * v}, v{O + 8 * gm + 2 * v + 1}')
        k(f'global_store_dwordx4 v{4 + gm}, v[{96 + 4 * gm}:{99 + 4 * gm}], s[16:17] offset:{16 * gm}')
    stamp_out(k, 5, sel=(0, 255))
    k('fa_end:\ns_endpgm')
    return k

def gen_B():
    TS = 4096 + 64
    REG2 = 2 * TS
    k = Kern('fb_kernel', 257, lds=2 * REG2)
    stamp(k, 0)
    k('s_cmp_ge_u32 s2, 257\ns_cbranch_scc1 fb_end')
    k(f's_load_dwordx2 s[8:9], s[0:1], {KA_WS}')
    pcaddr(k, 10, 'tabB')
    k('v_and_b32 v1, 63, v0\nv_lshrrev_b32 v2, 6, v0\nv_lshlrev_b32 v3, 4, v1')
    k('v_mul_u32_u24 v4, 12288, v2\nv_add_u32 v4, v4, v3\nv_add_u32 v5, 4096, v4\nv_add_u32 v6, 8192, v4')
    TB = 32
    for i in range(12): tload(k, TB + 4 * i, 4 + (i >> 2), 10, i & 3)
    B1R, B1I, FR, FI, A4R, A4I, T1C, T1S, T2C, T2S, SG, KP = [TB + 4 * i for i in range(12)]
    xcd_map(k, 14)
    k('s_cmp_eq_u32 s2, 256\ns_cselect_b32 s14, 256, s14\ns_and_b32 s15, s14, 255')
    k('v_and_b32 v7, 1, v0\nv_bfe_u32 v8, v0, 1, 2\nv_bfe_u32 v9, v0, 3, 4\nv_lshrrev_b32 v10, 7, v0')
    k('v_lshl_add_u32 v11, v10, 2, v8\nv_lshl_add_u32 v11, v11, 4, v9\nv_lshlrev_b32 v11, 13, v11\nv_lshl_add_u32 v11, v7, 4, v11')
    k('s_lshl_b32 s16, s15, 5\nv_add_u32 v11, s16, v11\nv_add_u32 v12, 0x100000, v11')
    k(f'v_mul_u32_u24 v13, {TS}, v7\nv_lshl_add_u32 v13, v10, 8, v13\nv_lshl_add_u32 v13, v9, 4, v13\nv_lshl_add_u32 v13, v8, 2, v13')
    k('s_lshl_b32 s16, s14, 13\nv_lshlrev_b32 v14, 5, v1\nv_lshl_add_u32 v14, v2, 11, v14\nv_add_u32 v14, s16, v14')
    k('s_waitcnt lgkmcnt(0)')
    stamp(k, 1)
    addc(k, 16, 8, WS_P); addc(k, 18, 8, WS_WT); addc(k, 20, 8, WS_Q)
    k('global_load_dwordx4 v[16:19], v14, s[18:19]\nglobal_load_dwordx4 v[20:23], v14, s[18:19] offset:16')
    k('global_load_dwordx4 v[24:27], v11, s[16:17]\nglobal_load_dwordx4 v[28:31], v12, s[16:17]')
    k('v_readfirstlane_b32 s22, v2')
    k('s_sub_u32 s23, 0, s22\ns_and_b32 s23, s23, 3')
    k(f's_lshl_b32 s24, s22, 10\ns_lshl_b32 s23, s23, 10\ns_add_u32 s25, s24, {TS}')
    k('s_mov_b32 s26, 0\ns_mov_b32 s27, 0\ns_mov_b64 s[28:29], -1')
    k(f's_cmp_eq_u32 s14, 0\ns_cselect_b32 s30, s23, s25\ns_cselect_b32 s27, 0x80000000, s27\ns_cselect_b32 s28, 0x55555555, s28\ns_cselect_b32 s29, 0x55555555, s29')
    k(f's_add_u32 s23, s23, {TS}\ns_cmp_eq_u32 s14, 256\ns_cselect_b32 s31, s23, s24\ns_cselect_b32 s26, 0x80000000, s26\ns_cselect_b32 s28, 0xaaaaaaaa, s28\ns_cselect_b32 s29, 0xaaaaaaaa, s29')
    k('v_add_u32 v8, s31, v3\nv_add_u32 v9, s30, v3\nv_add_u32 v10, s24, v3')
    PR, PI, RR, RI, KR, KI = 80, 84, 88, 92, 96, 100
    k('s_waitcnt vmcnt(2)')
    for r in range(4):
        t = 104
        unpack(k, t, t + 1, 16 + 2 * r); unpack(k, t + 2, t + 3, 17 + 2 * r)
        k(f'v_add_f32 v{t + 4}, v{t}, v{t + 2}\nv_add_f32 v{t + 5}, v{t + 1}, v{t + 3}\nv_sub_f32 v{t + 6}, v{t}, v{t + 2}\nv_sub_f32 v{t + 7}, v{t + 1}, v{t + 3}')
        k(f'v_fma_f32 v{PR + r}, -v{SG + r}, v{t + 6}, v{t + 4}\nv_fma_f32 v{PI + r}, -v{SG + r}, v{t + 7}, v{t + 5}')
        k(f'v_fma_f32 v{RR + r}, v{SG + r}, v{t + 6}, v{t + 4}\nv_fma_f32 v{RI + r}, v{SG + r}, v{t + 7}, v{t + 5}')
        k(f'v_mul_f32 v{KR + r}, v{KP + r}, v{t + 6}\nv_mul_f32 v{KI + r}, v{KP + r}, v{t + 7}')
    k('s_waitcnt vmcnt(1)')
    stamp(k, 2)
    for v in range(4): k(f'ds_write_b32 v13, v{24 + v} offset:{1024 * v}')
    k('s_waitcnt vmcnt(0)')
    for v in range(4): k(f'ds_write_b32 v13, v{28 + v} offset:{1024 * v + 512}')
    k('s_waitcnt lgkmcnt(0)\ns_barrier')
    k('ds_read_b128 v[16:19], v8\nds_read_b128 v[20:23], v9')
    k('s_waitcnt lgkmcnt(1)')
    for r in range(4): k(f'v_xor_b32 v{16 + r}, s26, v{16 + r}')
    k('s_waitcnt lgkmcnt(0)')
    for r in range(4): k(f'v_xor_b32 v{20 + r}, s27, v{20 + r}')
    D = 104
    TW = 120
    for c in range(2):
        m16(k, D + 8 * c, 16 + 4 * c, B1R); m16(k, D + 8 * c + 4, 16 + 4 * c, B1I)
    for c in range(2):
        for r in range(4): cmul(k, TW + 8 * c + 2 * r, TW + 8 * c + 2 * r + 1, D + 8 * c + r, D + 8 * c + 4 + r, T1C + r, T1S + r, -1)
        for r in range(4): k(f'v_cvt_pk_bf16_f32 v{16 + 4 * c + r}, v{TW + 8 * c + 2 * r}, v{TW + 8 * c + 2 * r + 1}')
        m16(k, D + 8 * c, FR, 16 + 4 * c); m16(k, D + 8 * c + 4, FI, 16 + 4 * c)
    AR, AI, BR, BI = D, D + 4, D + 8, D + 12
    for r in range(4):
        cr, ci, er, ei = TW + 4 * r, TW + 4 * r + 1, TW + 4 * r + 2, TW + 4 * r + 3
        k(f'v_mul_f32 v{cr}, v{PR + r}, v{AR + r}\nv_mul_f32 v{ci}, v{PR + r}, v{AI + r}\nv_mul_f32 v{er}, v{KI + r}, v{AR + r}\nv_mul_f32 v{ei}, v{KI + r}, v{AI + r}')
        k(f'v_fma_f32 v{cr}, -v{PI + r}, v{AI + r}, v{cr}\nv_fmac_f32 v{ci}, v{PI + r}, v{AR + r}\nv_fmac_f32 v{er}, v{KR + r}, v{AI + r}\nv_fma_f32 v{ei}, -v{KR + r}, v{AR + r}, v{ei}')
    for r in range(4):
        cr, ci, er, ei = TW + 4 * r, TW + 4 * r + 1, TW + 4 * r + 2, TW + 4 * r + 3
        k(f'v_fma_f32 v{cr}, -v{KI + r}, v{BR + r}, v{cr}\nv_fma_f32 v{ci}, -v{KI + r}, v{BI + r}, v{ci}\nv_fmac_f32 v{er}, v{RR + r}, v{BR + r}\nv_fmac_f32 v{ei}, v{RR + r}, v{BI + r}')
        k(f'v_fma_f32 v{cr}, -v{KR + r}, v{BI + r}, v{cr}\nv_fmac_f32 v{ci}, v{KR + r}, v{BR + r}\nv_fma_f32 v{er}, -v{RI + r}, v{BI + r}, v{er}\nv_fmac_f32 v{ei}, v{RI + r}, v{BR + r}')
        k(f'v_cvt_pk_bf16_f32 v{16 + r}, v{ci}, v{cr}\nv_cvt_pk_bf16_f32 v{20 + r}, v{ei}, v{er}')
    for c in range(2):
        m16(k, D + 8 * c + 4, 16 + 4 * c, FR); m16(k, D + 8 * c, 16 + 4 * c, FI)
    for c in range(2):
        for r in range(4): cmul(k, TW + 8 * c + 2 * r, TW + 8 * c + 2 * r + 1, D + 8 * c + r, D + 8 * c + 4 + r, T2C + r, T2S + r, +1)
        for r in range(4): k(f'v_cvt_pk_bf16_f32 v{16 + 4 * c + r}, v{TW + 8 * c + 2 * r}, v{TW + 8 * c + 2 * r + 1}')
        m16(k, D + 8 * c, A4R, 16 + 4 * c); m16(k, D + 8 * c + 4, A4I, 16 + 4 * c)
    for c in range(2):
        for r in range(4): k(f'v_cvt_pk_bf16_f32 v{24 + 4 * c + r}, v{D + 8 * c + r}, v{D + 8 * c + 4 + r}')
        k(f'ds_write_b128 v10, v[{24 + 4 * c}:{27 + 4 * c}] offset:{REG2 + TS * c}')
    k('s_waitcnt lgkmcnt(0)\ns_barrier')
    for i in range(2):
        for v in range(4): k(f'ds_read_b32 v{16 + 4 * i + v}, v13 offset:{REG2 + 1024 * v + 512 * i}')
    k('s_mov_b64 exec, s[28:29]')
    k('s_waitcnt lgkmcnt(4)\nglobal_store_dwordx4 v11, v[16:19], s[20:21]')
    k('s_waitcnt lgkmcnt(0)\nglobal_store_dwordx4 v12, v[20:23], s[20:21]')
    stamp_out(k, 4, sel=(0, 255, 256))
    k('fb_end:\ns_endpgm')
    return k

def gen_C():
    k = Kern('fc_kernel', 256, lds=8192 + 256)
    stamp(k, 0)
    k('s_cmp_ge_u32 s2, 256\ns_cbranch_scc1 fc_end')
    k(f's_load_dwordx2 s[4:5], s[0:1], {KA_X}\ns_load_dwordx2 s[8:9], s[0:1], {KA_WS}')
    pcaddr(k, 10, 'tabC1'); pcaddr(k, 12, 'tabC2')
    k('v_and_b32 v1, 63, v0\nv_lshrrev_b32 v2, 6, v0\nv_lshlrev_b32 v3, 4, v1')
    k('v_add_u32 v6, 4096, v3\nv_mul_u32_u24 v4, 10240, v2\nv_add_u32 v4, v4, v3\nv_add_u32 v5, 4096, v4\nv_add_u32 v7, 8192, v4')
    T1 = 32
    for i in range(8): tload(k, T1 + 4 * i, 3 if i < 4 else 6, 10, i & 3)
    T2 = 64
    for i in range(10): tload(k, T2 + 4 * i, (4, 5, 7)[i >> 2], 12, i & 3)
    xcd_map(k, 14)
    k('v_and_b32 v8, 15, v1\nv_lshl_add_u32 v8, v2, 4, v8\nv_lshrrev_b32 v9, 4, v1')
    k('v_lshl_add_u32 v4, v9, 6, v8\nv_sub_u32 v5, 256, v4\nv_and_b32 v5, 255, v5\nv_lshlrev_b32 v4, 5, v4\nv_lshlrev_b32 v5, 5, v5')
    k('v_lshrrev_b32 v10, 1, v9\nv_lshlrev_b32 v10, 19, v10\nv_and_b32 v11, 1, v9\nv_lshl_add_u32 v10, v11, 10, v10\nv_lshl_add_u32 v10, v8, 4, v10')
    k('s_lshl_b32 s15, s14, 11\nv_add_u32 v10, s15, v10\nv_add_u32 v11, 0x100000, v10')
    k('v_lshlrev_b32 v6, 5, v8\nv_add_u32 v6, 4096, v6')
    k('s_waitcnt lgkmcnt(0)')
    stamp(k, 1)
    addc(k, 16, 8, WS_Q)
    k('s_lshl_b32 s15, s14, 13\ns_add_u32 s16, s16, s15\ns_addc_u32 s17, s17, 0')
    k('global_load_dwordx4 v[12:15], v4, s[16:17]\nglobal_load_dwordx4 v[16:19], v5, s[16:17] offset:16')
    XR = 104
    k(f'global_load_dwordx4 v[{XR}:{XR + 3}], v10, s[4:5]\nglobal_load_dwordx4 v[{XR + 4}:{XR + 7}], v11, s[4:5]')
    GA, SB, CB = 112, 120, 128
    k(f'global_load_dwordx4 v[{GA}:{GA + 3}], v6, s[8:9]\nglobal_load_dwordx4 v[{GA + 4}:{GA + 7}], v6, s[8:9] offset:16')
    k(f'global_load_dwordx4 v[{SB}:{SB + 3}], v6, s[8:9] offset:2048\nglobal_load_dwordx4 v[{SB + 4}:{SB + 7}], v6, s[8:9] offset:2064')
    k('v_add_u32 v7, 4096, v6')
    k(f'global_load_dwordx4 v[{CB}:{CB + 3}], v7, s[8:9]\nglobal_load_dwordx4 v[{CB + 4}:{CB + 7}], v7, s[8:9] offset:16')
    k('v_lshl_add_u32 v4, v2, 11, v3')
    k('v_lshlrev_b32 v5, 5, v9\nv_add_u32 v5, 8192, v5\nv_lshl_add_u32 v6, v2, 3, v5')
    k('s_lshr_b32 s15, s14, 2\ns_lshl_b32 s15, s15, 15\ns_and_b32 s18, s14, 3\ns_lshl_b32 s18, s18, 7\ns_add_u32 s15, s15, s18')
    k('v_lshlrev_b32 v7, 9, v8\nv_lshl_add_u32 v7, v9, 4, v7\nv_add_u32 v7, s15, v7')
    addc(k, 18, 8, WS_X1); addc(k, 20, 8, WS_H2)
    D = 136
    k('s_waitcnt vmcnt(9)')
    stamp(k, 2)
    for q in range(4): m16(k, D + 4 * q, 12, T1 + 8 * q)
    k('s_waitcnt vmcnt(8)')
    for q in range(4): m16(k, D + 4 * q, 16, T1 + 8 * q + 4, D + 4 * q)
    TW = 12; Y = 28 + 0
    for b in range(2):
        for r in range(4): cmul(k, 152 + 2 * r, 153 + 2 * r, D + 8 * b + r, D + 8 * b + 4 + r, T2 + r, T2 + 4 + r, +1)
        for r in range(4): k(f'v_cvt_pk_bf16_f32 v{20 + 4 * b + r}, v{152 + 2 * r}, v{153 + 2 * r}')
        k(f'ds_write_b128 v4, v[{20 + 4 * b}:{23 + 4 * b}] offset:{1024 * b}')
    k('s_waitcnt lgkmcnt(0)\ns_barrier')
    AF = 32
    for t in range(4):
        for b in range(2): k(f'ds_read_b128 v[{AF + 4 * (2 * t + b)}:{AF + 4 * (2 * t + b) + 3}], v3 offset:{2048 * t + 1024 * b}')
    for t in range(4):
        k(f's_waitcnt lgkmcnt({6 - 2 * t})')
        for b in range(2):
            for p in range(2):
                d = D + 8 * b + 4 * p
                m16(k, d, AF + 4 * (2 * t + b), T2 + 8 + 16 * p + 4 * t, None if t == 0 else d)
    X = 32
    k('s_waitcnt vmcnt(0)')
    for b in range(2):
        for j in range(4): unpack(k, X + 8 * b + 2 * j, X + 8 * b + 2 * j + 1, XR + 4 * b + j)
    for b in range(2):
        for p in range(2):
            for i in range(2): k(f'v_cvt_pk_bf16_f32 v{12 + 4 * b + 2 * p + i}, v{D + 8 * b + 4 * p + 2 * i}, v{D + 8 * b + 4 * p + 2 * i + 1}')
    for b in range(2):
        for i in range(2): k(f'v_permlane16_swap_b32 v{12 + 4 * b + i}, v{14 + 4 * b + i}')
    YF = 48
    for b in range(2):
        for j in range(4): unpack(k, YF + 8 * b + 2 * j, YF + 8 * b + 2 * j + 1, 12 + 4 * b + j)
    for b in range(2):
        for e in range(8): k(f'v_fmac_f32 v{X + 8 * b + e}, v{YF + 8 * b + e}, v{GA + e}')
    for b in range(2):
        for j in range(4): k(f'v_cvt_pk_bf16_f32 v{12 + 4 * b + j}, v{X + 8 * b + 2 * j}, v{X + 8 * b + 2 * j + 1}')
        k(f'global_store_dwordx4 v7, v[{12 + 4 * b}:{15 + 4 * b}], s[18:19] offset:{64 * b}')
    for b in range(2):
        for j in range(4): unpack(k, X + 8 * b + 2 * j, X + 8 * b + 2 * j + 1, 12 + 4 * b + j)
    S = 20
    for p in range(2):
        k(f'v_add_f32 v{S + 2 * p}, v{X + 8 * p}, v{X + 8 * p + 1}\nv_mul_f32 v{S + 2 * p + 1}, v{X + 8 * p}, v{X + 8 * p}')
    for p in range(2): k(f'v_fmac_f32 v{S + 2 * p + 1}, v{X + 8 * p + 1}, v{X + 8 * p + 1}')
    for e in range(2, 8):
        for p in range(2):
            k(f'v_add_f32 v{S + 2 * p}, v{S + 2 * p}, v{X + 8 * p + e}\nv_fmac_f32 v{S + 2 * p + 1}, v{X + 8 * p + e}, v{X + 8 * p + e}')
    for sh in (8, 4, 2, 1):
        for q in range(4): k(f'v_add_f32_dpp v{S + q}, v{S + q}, v{S + q} row_ror:{sh} row_mask:0xf bank_mask:0xf')
    k(f'ds_write_b64 v6, v[{S}:{S + 1}]\nds_write_b64 v6, v[{S + 2}:{S + 3}] offset:128')
    k('s_waitcnt lgkmcnt(0)\ns_barrier')
    for b in range(2): k(f'ds_read_b128 v[{48 + 8 * b}:{51 + 8 * b}], v5 offset:{128 * b}\nds_read_b128 v[{52 + 8 * b}:{55 + 8 * b}], v5 offset:{128 * b + 16}')
    k('s_waitcnt lgkmcnt(0)')
    for b in range(2):
        q = 48 + 8 * b
        k(f'v_add_f32 v{q}, v{q}, v{q + 2}\nv_add_f32 v{q + 1}, v{q + 1}, v{q + 3}\nv_add_f32 v{q + 4}, v{q + 4}, v{q + 6}\nv_add_f32 v{q + 5}, v{q + 5}, v{q + 7}')
    for b in range(2):
        q = 48 + 8 * b
        k(f'v_add_f32 v{q}, v{q}, v{q + 4}\nv_add_f32 v{q + 1}, v{q + 1}, v{q + 5}')
    for b in range(2):
        q = 48 + 8 * b
        k(f'v_mul_f32 v{q}, {INV512:#x}, v{q}\nv_mul_f32 v{q + 1}, {INV512:#x}, v{q + 1}')
    for b in range(2): q = 48 + 8 * b; k(f'v_fma_f32 v{q + 1}, -v{q}, v{q}, v{q + 1}')
    for b in range(2): q = 48 + 8 * b; k(f'v_max_f32 v{q + 1}, 0, v{q + 1}')
    for b in range(2): q = 48 + 8 * b; k(f'v_add_f32 v{q + 1}, {EPS:#x}, v{q + 1}')
    for b in range(2): q = 48 + 8 * b; k(f'v_rsq_f32 v{q + 1}, v{q + 1}')
    for b in range(2):
        for e in range(8): k(f'v_sub_f32 v{X + 8 * b + e}, v{X + 8 * b + e}, v{48 + 8 * b}')
    for b in range(2):
        for e in range(8): k(f'v_mul_f32 v{X + 8 * b + e}, v{X + 8 * b + e}, v{49 + 8 * b}')
    for b in range(2):
        for e in range(8): k(f'v_fma_f32 v{X + 8 * b + e}, v{X + 8 * b + e}, v{CB + e}, v{SB + e}')
        for j in range(4): k(f'v_cvt_pk_bf16_f32 v{24 + 4 * b + j}, v{X + 8 * b + 2 * j}, v{X + 8 * b + 2 * j + 1}')
        k(f'global_store_dwordx4 v7, v[{24 + 4 * b}:{27 + 4 * b}], s[20:21] offset:{64 * b}')
    stamp_out(k, 4, sel=(0, 255))
    k('fc_end:\ns_endpgm')
    return k

def gen_D():
    k = Kern('gd_kernel', 256, lds=96 * 1024)
    stamp(k, 0)
    k('s_cmp_ge_u32 s2, 256\ns_cbranch_scc1 gd_end')
    k(f's_load_dwordx2 s[8:9], s[0:1], {KA_WS}')
    k('v_and_b32 v1, 63, v0\nv_lshrrev_b32 v2, 6, v0\nv_lshlrev_b32 v3, 4, v1')
    k('v_readfirstlane_b32 s22, v2')
    k('s_and_b32 s14, s2, 7\ns_lshl_b32 s14, s14, 1\ns_lshr_b32 s15, s2, 7\ns_add_u32 s14, s14, s15')
    k('s_lshr_b32 s15, s2, 3\ns_and_b32 s15, s15, 15')
    k('s_mul_i32 s16, s15, 3\ns_lshl_b32 s17, s15, 1\ns_add_u32 s17, s17, 11\ns_cmp_lt_u32 s15, 11\ns_cselect_b32 s16, s16, s17\ns_cselect_b32 s23, 1, 0')
    k('s_lshl_b32 s17, s14, 2\ns_add_u32 s17, s17, s22')
    k('s_lshl_b32 s18, s16, 15\ns_lshl_b32 s19, s22, 11\ns_add_u32 s18, s18, s19\nv_add_u32 v4, s18, v3\nv_add_u32 v5, 32768, v4')
    k('s_lshl_b32 s19, s23, 16\nv_add_u32 v6, s19, v4')
    k('s_mul_i32 s24, s22, 6144')
    k('s_waitcnt lgkmcnt(0)')
    stamp(k, 1)
    addc(k, 10, 8, WS_W1F); addc(k, 12, 8, WS_H2)
    k('s_lshl_b32 s18, s17, 15\ns_add_u32 s12, s12, s18\ns_addc_u32 s13, s13, 0')
    k('v_add_u32 v7, 4096, v3')
    H = 64
    for c in range(4):
        for i in range(6):
            tt, b = i // 3, i % 3
            k(f's_add_u32 m0, s24, {c * 24576 + tt * 2048 + b * 1024}')
            k(f'global_load_lds_dwordx4 v{4 + b}, s[10:11] offset:{tt * 1024}')
        for i in range(8):
            t = 8 * c + i
            k(f'global_load_dwordx4 v[{H + 4 * t}:{H + 4 * t + 3}], v{3 if i < 4 else 7}, s[12:13] offset:{(i & 3) * 1024}')
        if c < 3:
            addc(k, 10, 10, 8192); addc(k, 12, 12, 8192)
    addc(k, 20, 8, WS_ACT)
    k(f's_mul_i32 s18, s17, {86 * 1024}\ns_lshl_b32 s19, s16, 11\ns_add_u32 s18, s18, s19\ns_add_u32 s20, s20, s18\ns_addc_u32 s21, s21, 0')
    W = 16
    NS = 3
    def wread(t):
        base = W + 12 * (t % NS)
        for b in range(3):
            off = (t * 3 + b) * 1024
            vb = 3 if off < 65536 else 8
            k(f'ds_read_b128 v[{base + 4 * b}:{base + 4 * b + 3}], v{vb} offset:{off & 65535}')
    k('v_add_u32 v8, 65536, v3')
    for c in range(4):
        k(f's_waitcnt vmcnt({42 - 14 * c})\ns_barrier')
        if c == 0: stamp(k, 2)
        wread(8 * c); wread(8 * c + 1)
        for i in range(8):
            t = 8 * c + i
            if i < 6: wread(t + 2); k('s_waitcnt lgkmcnt(6)')
            elif i == 6: k('s_waitcnt lgkmcnt(3)')
            else: k('s_waitcnt lgkmcnt(0)')
            base = W + 12 * (t % NS)
            for b in range(3):
                k(f'{M32} a[{16 * b}:{16 * b + 15}], v[{base + 4 * b}:{base + 4 * b + 3}], v[{H + 4 * t}:{H + 4 * t + 3}], ' + ('0' if t == 0 else f'a[{16 * b}:{16 * b + 15}]'))
    stamp(k, 3)
    for b in range(3):
        if b == 2: k('s_cmp_eq_u32 s23, 0\ns_cbranch_scc1 gd_skip')
        X = 64; E = 80
        for e in range(16): k(f'v_accvgpr_read_b32 v{X + e}, a{16 * b + e}')
        for e in range(16): k(f'v_mul_f32 v{E + e}, {NLOG2E:#x}, v{X + e}')
        for e in range(16): k(f'v_exp_f32 v{E + e}, v{E + e}')
        for e in range(16): k(f'v_add_f32 v{E + e}, 1.0, v{E + e}')
        for e in range(16): k(f'v_rcp_f32 v{E + e}, v{E + e}')
        for e in range(16): k(f'v_mul_f32 v{X + e}, v{X + e}, v{E + e}')
        O = 96 + 8 * b
        for j in range(8): k(f'v_cvt_pk_bf16_f32 v{O + j}, v{X + 2 * j}, v{X + 2 * j + 1}')
        vb = 3 if b < 2 else 7
        k(f'global_store_dwordx4 v{vb}, v[{O}:{O + 3}], s[20:21] offset:{(2048 * b) & 4095}\nglobal_store_dwordx4 v{vb}, v[{O + 4}:{O + 7}], s[20:21] offset:{((2048 * b) & 4095) + 1024}')
    k('gd_skip:')
    stamp_out(k, 5, sel=(0, 255))
    k('gd_end:\ns_endpgm')
    return k

def gen_E():
    k = Kern('ge_kernel', 256, lds=48 * 1024)
    stamp(k, 0)
    k('s_cmp_ge_u32 s2, 256\ns_cbranch_scc1 ge_end')
    k(f's_load_dwordx2 s[8:9], s[0:1], {KA_WS}\ns_load_dwordx2 s[6:7], s[0:1], {KA_OUT}')
    k('v_and_b32 v1, 63, v0\nv_lshrrev_b32 v2, 6, v0\nv_lshlrev_b32 v3, 4, v1')
    k('v_readfirstlane_b32 s22, v2')
    k('s_and_b32 s14, s2, 7\ns_lshl_b32 s14, s14, 2\ns_lshr_b32 s15, s2, 6\ns_add_u32 s14, s14, s15')
    k('s_lshr_b32 s15, s2, 3\ns_and_b32 s15, s15, 7')
    k('s_mul_i32 s16, s22, 22\ns_add_u32 s16, s16, 1\ns_mul_i32 s17, s22, 21\ns_add_u32 s17, s17, 2\ns_cmp_lt_u32 s22, 2\ns_cselect_b32 s16, s16, s17')
    k('s_lshl_b32 s16, s16, 10')
    FS = 86 * 1024
    k(f's_mul_i32 s17, s14, {2 * FS}\ns_add_u32 s17, s17, s16\ns_mul_i32 s18, s15, {2 * FS}\ns_add_u32 s18, s18, s16')
    k(f'v_add_u32 v4, {FS}, v3')
    k('s_waitcnt lgkmcnt(0)')
    stamp(k, 1)
    addc(k, 10, 8, WS_ACT); addc(k, 12, 8, WS_W2F)
    k('s_add_u32 s10, s10, s17\ns_addc_u32 s11, s11, 0\ns_add_u32 s12, s12, s18\ns_addc_u32 s13, s13, 0')
    def breg(i, q):
        if i < 14: b = 32 + 16 * i + 4 * q; return f'v[{b}:{b + 3}]'
        b = 64 + 16 * (i - 14) + 4 * q; return f'a[{b}:{b + 3}]'
    def loads(i):
        rel = i - 1
        if rel >= 0 and rel > 0 and rel % 4 == 0:
            addc(k, 10, 10, 4096); addc(k, 12, 12, 4096)
        off = (rel % 4) * 1024 if rel >= 0 else -1024
        k(f'global_load_dwordx4 {breg(i, 0)}, v3, s[12:13] offset:{off}\nglobal_load_dwordx4 {breg(i, 2)}, v3, s[10:11] offset:{off}')
        k(f'global_load_dwordx4 {breg(i, 1)}, v4, s[12:13] offset:{off}\nglobal_load_dwordx4 {breg(i, 3)}, v4, s[10:11] offset:{off}')
    def mm(i):
        for rb in range(2):
            for cb in range(2):
                t = rb * 2 + cb
                k(f'{M32} a[{16 * t}:{16 * t + 15}], {breg(i, cb)}, {breg(i, 2 + rb)}, a[{16 * t}:{16 * t + 15}]')
    k('s_cmp_lt_u32 s22, 2\ns_cbranch_scc0 ge_no0a')
    loads(0)
    k('ge_no0a:')
    PRE = 14
    for i in range(1, PRE + 1): loads(i)
    for e in range(64): k(f'v_accvgpr_write_b32 a{e}, 0')
    k('s_lshr_b32 s16, s22, 1\ns_lshl_b32 s17, s14, 1\ns_add_u32 s16, s16, s17')
    k('s_and_b32 s17, s22, 1\ns_lshl_b32 s18, s15, 1\ns_add_u32 s17, s17, s18')
    k('s_lshl_b32 s18, s16, 15\ns_lshl_b32 s19, s17, 11\ns_add_u32 s18, s18, s19')
    k('v_and_b32 v5, 31, v1\nv_lshrrev_b32 v6, 5, v1\nv_lshlrev_b32 v7, 4, v5\nv_lshl_add_u32 v7, v6, 3, v7\nv_add_u32 v7, s18, v7')
    k(f's_lshl_b32 s18, s17, 7\ns_add_u32 s18, s18, {5 * 2048}\nv_lshlrev_b32 v8, 4, v6\nv_add_u32 v8, s18, v8')
    k('v_bfe_u32 v9, v5, 1, 2\nv_lshlrev_b32 v9, 19, v9\nv_lshrrev_b32 v10, 3, v5\nv_lshl_add_u32 v9, v10, 11, v9\nv_and_b32 v10, 1, v5\nv_lshl_add_u32 v9, v10, 10, v9')
    k('v_lshl_add_u32 v9, v6, 4, v9\ns_lshl_b32 s18, s16, 13\ns_lshl_b32 s19, s17, 6\ns_add_u32 s18, s18, s19\nv_add_u32 v9, s18, v9')
    addc(k, 20, 8, WS_X1)
    k('s_cmp_lt_u32 s22, 2\ns_cbranch_scc0 ge_no0b')
    k(f's_waitcnt vmcnt({4 * PRE})')
    mm(0)
    k('ge_no0b:')
    for i in range(1, 22):
        nxt = i + PRE
        later = min(21, i + PRE - 1) - i
        k(f's_waitcnt vmcnt({4 * later + (8 if i > 21 - PRE + 1 else 0)})')
        if i == 1: stamp(k, 2)
        mm(i)
        if nxt <= 21: loads(nxt)
        if nxt == 22:
            for j in range(4): k(f'global_load_dwordx2 v[{12 + 2 * j}:{13 + 2 * j}], v7, s[20:21] offset:{512 * j}')
            for j in range(4): k(f'global_load_dwordx4 v[{32 + 4 * j}:{35 + 4 * j}], v8, s[8:9] offset:{32 * j}')
    stamp(k, 3)
    for w in range(4):
        nx = k.lab('red')
        k(f's_cmp_eq_u32 s22, {w}\ns_cbranch_scc0 {nx}')
        for t in range(4):
            if t == w: continue
            sl = t * 3 + (w if w < t else w - 1)
            for q in range(4): k(f'ds_write_b128 v3, a[{16 * t + 4 * q}:{16 * t + 4 * q + 3}] offset:{sl * 4096 + q * 1024}')
        for e in range(16): k(f'v_accvgpr_read_b32 v{48 + e}, a{16 * w + e}')
        k(f'{nx}:')
    k('s_mul_i32 s16, s22, 12288\nv_add_u32 v4, s16, v3')
    k('s_waitcnt lgkmcnt(0)\ns_barrier')
    for i in range(12): k(f'ds_read_b128 v[{64 + 4 * i}:{67 + 4 * i}], v4 offset:{i * 1024}')
    k('s_waitcnt vmcnt(0)')
    for j in range(8): unpack(k, 112 + 2 * j, 113 + 2 * j, 12 + j)
    for s_ in range(3):
        k(f's_waitcnt lgkmcnt({8 - 4 * s_})')
        for e in range(16): k(f'v_add_f32 v{48 + e}, v{48 + e}, v{64 + 16 * s_ + e}')
    for e in range(16): k(f'v_fmac_f32 v{112 + e}, v{48 + e}, v{32 + e}')
    for j in range(8): k(f'v_cvt_pk_bf16_f32 v{12 + j}, v{112 + 2 * j}, v{113 + 2 * j}')
    for jp in range(2):
        for i in range(2): k(f'v_permlane32_swap_b32 v{12 + 4 * jp + i}, v{14 + 4 * jp + i}')
    for jp in range(2): k(f'global_store_dwordx4 v9, v[{12 + 4 * jp}:{15 + 4 * jp}], s[6:7] offset:{32 * jp}')
    stamp_out(k, 5, sel=(0, 255))
    k('ge_end:\ns_endpgm')
    return k

HEADER = open('adaLN_cond__spectral_gfnet__dense_activation_silu__prompt.s.ref').read().split('; Override')[0]
if __name__ == '__main__':
    ks = [gen_prep(), gen_A(), gen_B(), gen_C(), gen_D(), gen_E()]
    a1, a2 = T.table_A(); tb = T.table_B(); c1, c2 = T.table_C()
    tabs = T.emit_table('tabA1', a1) + T.emit_table('tabA2', a2) + T.emit_table('tabB', tb) + T.emit_table('tabC1', c1) + T.emit_table('tabC2', c2)
    s = assemble_file(HEADER, ks, tabs)
    out = [a for a in sys.argv[1:] if not a.startswith('--')][0]
    open(out, 'w').write(s)
    for k in ks: print(k.name, 'insts', k.ninst, 'v', k.nv, 'a', k.na, file=sys.stderr)
```
